```python
import torch

def _softmax(x, axis=-1):
    return torch.softmax(x, dim=axis)
def _gelu(x):
    return torch.nn.functional.gelu(x, approximate="tanh")
def _silu(x):
    return torch.nn.functional.silu(x)
def _sigmoid(x):
    return torch.sigmoid(x)
def _layernorm(x, axis=-1, eps=1e-5):
    m = x.mean(dim=axis, keepdim=True)
    v = x.var(dim=axis, keepdim=True, unbiased=False)
    return (x - m) / torch.sqrt(v + eps)
def _scatter_add(tgt, idx, src, axis=0):
    return tgt.clone().index_add_(axis, idx, src)
def _segment_sum(src, seg, n):
    out = torch.zeros((n,) + src.shape[1:], dtype=src.dtype)
    return out.index_add_(0, seg, src)
def _pad(x, pw):
    flat = tuple(v for pair in reversed(pw) for v in pair)
    return torch.nn.functional.pad(x, flat)

kernel_name = 'standalone__mha_block_cached__near_ridge'

def setup_inputs():

    _w = (lambda a: (lambda t: t.to(torch.bfloat16) if t.is_floating_point() else t)(torch.as_tensor(a)))
    B, Sq, D = 8, 240, 576
    H, Sk, Dh = 32, 2048, 128
    return {
        "x": _w((lambda *s: torch.randn(*s, dtype=torch.bfloat16) * 0.8)(B, Sq, D)),
        "k_cache": _w((lambda *s: torch.randn(*s, dtype=torch.bfloat16) * 0.8)(B, H, Sk, Dh)),
        "v_cache": _w((lambda *s: torch.randn(*s, dtype=torch.bfloat16) * 0.05)(B, H, Sk, Dh)),
        "wq": _w((lambda *s: torch.randn(*s, dtype=torch.bfloat16) * 0.8)(D, H * Dh) * (D ** -0.5)),
        "wo": _w((lambda *s: torch.randn(*s, dtype=torch.bfloat16) * 0.05)(H * Dh, D) * ((H * Dh) ** -0.5)),
    }

def reference(x, k_cache, v_cache, wq, wo):
    B, Sq, D = x.shape
    H, Dh = 32, 128
    q = (lambda x, *d: x.permute(*d))((x @ wq).reshape(B, Sq, H, Dh), 0, 2, 1, 3)
    scores = torch.einsum("bhqd,bhkd->bhqk", q, k_cache) * (Dh ** -0.5)
    p = _softmax(scores, axis=-1)
    o = torch.einsum("bhqk,bhkd->bhqd", p, v_cache)
    return (lambda x, *d: x.permute(*d))(o, 0, 2, 1, 3).reshape(B, Sq, H * Dh) @ wo
```

```python
KNAME = "standalone__mha_block_cached__near_ridge_kernel"

class Asm:
    def __init__(self):
        self.lines = []
    def __call__(self, s=""):
        for l in s.split("\n"):
            self.lines.append(l)
    def label(self, name):
        self.lines.append(name + ":")
    def text(self):
        return "\n".join(self.lines) + "\n"

def header(launches, comment=""):
    out = []
    for (k, g, b, lds) in launches:
        if k is None:
            out.append("; @launch grid=(%d,%d,%d) block=(%d,%d,%d) lds=%d" % (g + b + (lds,)))
        else:
            out.append("; @launch kernel=%s grid=(%d,%d,%d) block=(%d,%d,%d) lds=%d" % ((k,) + g + b + (lds,)))
    if comment:
        out += ["; " + c for c in comment.split("\n")]
    out.append('.amdgcn_target "amdgcn-amd-amdhsa--gfx950"')
    out.append(".text")
    return "\n".join(out) + "\n"

def kernel_begin(name):
    return ".globl %s\n.p2align 8\n.type %s,@function\n%s:\n" % (name, name, name)

def kernel_desc(name, vgpr=512, accum=256, sgpr=102):
    return """.section .rodata,"a"
.p2align 6
.amdhsa_kernel %s
  .amdhsa_next_free_vgpr %d
  .amdhsa_next_free_sgpr %d
  .amdhsa_accum_offset %d
  .amdhsa_group_segment_fixed_size 0
  .amdhsa_kernarg_size 64
  .amdhsa_user_sgpr_count 2
  .amdhsa_user_sgpr_kernarg_segment_ptr 1
  .amdhsa_system_sgpr_workgroup_id_x 1
.end_amdhsa_kernel
""" % (name, vgpr, sgpr, accum)
```

```python
import re

REG = re.compile(r'^(v|a|s)(\d+)$|^(v|a|s)\[(\d+):(\d+)\]$')

def regs(tok):
    tok = tok.strip()
    m = REG.match(tok)
    if not m:
        if tok in ("vcc", "m0", "exec", "scc"): return [tok]
        return []
    if m.group(1):
        return [m.group(1) + m.group(2)]
    return [m.group(3) + str(i) for i in range(int(m.group(4)), int(m.group(5)) + 1)]

def parse(line):
    line = line.split(";")[0].strip()
    if not line or line.endswith(":") or line.startswith("."):
        return None
    parts = line.split(None, 1)
    op = parts[0]
    ops = []
    mods = ""
    if len(parts) > 1:
        toks = [t.strip() for t in parts[1].split(",")]
        last = toks[-1].split()
        if last:
            toks[-1] = last[0]
            mods = " ".join(last[1:])
        ops = toks
    return op, ops, mods

TRANS = ("v_exp_f32", "v_log_f32", "v_rcp_f32", "v_rsq_f32", "v_sqrt_f32", "v_sin_f32", "v_cos_f32")

def rw(op, ops, mods):
    R = lambda i: regs(ops[i]) if i < len(ops) else []
    allr = lambda a: sum((regs(t) for t in ops[a:]), [])
    if op.startswith("v_mfma"):
        return R(0), allr(1)
    if op.startswith("ds_read") or op.startswith("ds_bpermute") or op.startswith("ds_swizzle"):
        return R(0), allr(1)
    if op.startswith("ds_write"):
        return [], allr(0)
    if op.startswith("buffer_load"):
        if "lds" in mods.split():
            return [], allr(0) + ["m0"]
        return R(0), allr(1)
    if op.startswith("buffer_store") or op.startswith("global_store"):
        return [], allr(0)
    if op.startswith("buffer_atomic") or op.startswith("global_atomic"):
        if "sc0" in mods.split(): return R(0), allr(0)
        return [], allr(0)
    if op.startswith("global_load"):
        return R(0), allr(1)
    if op.startswith("buffer_wbl2") or op.startswith("buffer_inv"):
        return [], []
    if op.startswith("v_permlane32_swap") or op.startswith("v_permlane16_swap"):
        return R(0) + R(1), R(0) + R(1)
    if op.startswith("v_cmp"):
        return R(0), allr(1)
    if op.startswith("v_fmac") or op.startswith("v_dot2c") or op.startswith("v_pk_fmac"):
        return R(0), allr(0)
    if op.startswith("v_cndmask"):
        s = allr(1)
        if len(ops) == 3: s = s + ["vcc"]
        return R(0), s
    if op.startswith("v_add_co") or op.startswith("v_addc_co") or op.startswith("v_sub_co"):
        return R(0) + R(1), allr(2)
    if op.startswith("v_"):
        return R(0), allr(1)
    if op.startswith("s_cmp") or op.startswith("s_bitcmp"):
        return ["scc"], allr(0)
    if op in ("s_waitcnt", "s_barrier", "s_nop", "s_branch", "s_endpgm", "s_setprio", "s_sleep") or op.startswith("s_cbranch"):
        return [], []
    if op.startswith("s_"):
        return R(0), allr(1)
    return [], []

def is_valu(op): return op.startswith("v_") and not op.startswith("v_mfma")
def is_mfma(op): return op.startswith("v_mfma")
def is_vmem(op): return op.startswith("buffer_") or op.startswith("global_")
def is_ds(op): return op.startswith("ds_")
def passes(op): return 8 if "32x32" in op else 4

def verify(lines, name="", verbose=True, min_mfma_valu_cycles=0):
    errs = []
    lg = []
    vm = []
    hist = []
    state = 0
    last_w = {}
    last_srcC = {}
    last_store = {}
    n_wait = 0
    for ln, line in enumerate(lines):
        p = parse(line)
        if p is None: continue
        op, ops, mods = p
        if op == "s_nop":
            state += int(ops[0], 0) + 1
            continue
        if op == "s_waitcnt":
            txt = line.split(";")[0]
            m = re.search(r"lgkmcnt\((\d+)\)", txt)
            if m:
                n = int(m.group(1))
                while len(lg) > n: lg.pop(0)
            m = re.search(r"vmcnt\((\d+)\)", txt)
            if m:
                n = int(m.group(1))
                while len(vm) > n: vm.pop(0)
            state += 1; n_wait += 1
            continue
        dst, src = rw(op, ops, mods)
        def err(msg):
            errs.append("%s L%d: %s  <<%s>>" % (name, ln, msg, line.strip()))
        touched = set(dst) | set(src)
        for (d, l2) in lg:
            x = touched & set(d)
            if x: err("touches pending DS dest %s from <<%s>>" % (sorted(x)[:3], l2.strip()))
        for (d, l2) in vm:
            x = touched & set(d)
            if x: err("touches pending VMEM dest %s from <<%s>>" % (sorted(x)[:3], l2.strip()))
        for r in src:
            if r in last_w:
                st, kind, ps = last_w[r]
                dist = state - st - 1
                if kind == "mfma":
                    need = {4: 8, 8: 12}[ps]
                    if is_mfma(op):
                        c = regs(ops[3]) if len(ops) > 3 else []
                        if r in c and r not in regs(ops[1]) + regs(ops[2]):
                            if last_w.get(c[0], (None, None, None))[0] == st and len(c) == ps * 2 and ps == passes(op):
                                need = 0
                            else:
                                need = {4: 6, 8: 10}[ps]
                    if dist < need: err("MFMA D->read of %s needs %d states, has %d" % (r, need, dist))
                elif kind in ("valu", "trans"):
                    if is_mfma(op) and dist < 2: err("VALU->MFMA operand %s needs 2 states, has %d" % (r, dist))
                    if kind == "trans" and is_valu(op) and not op.startswith(TRANS) and dist < 1: err("trans->VALU %s needs 1" % r)
                    if op.startswith("v_permlane") and dist < 2: err("VALU->permlane %s needs 2, has %d" % (r, dist))
                    if (op.startswith("v_readfirstlane") or op.startswith("v_readlane")) and r[0] == "v" and dist < 1: err("VALU->readlane %s needs 1" % r)
                    if r[0] == "s" or r == "vcc":
                        if is_vmem(op) and dist < 5: err("VALU sgpr write->VMEM %s needs 5, has %d" % (r, dist))
                        if is_valu(op) and dist < 2: err("VALU sgpr write->VALU read %s needs 2, has %d" % (r, dist))
                elif kind == "salu":
                    if r == "m0" and is_vmem(op) and dist < 1: err("m0 write -> lds dma needs 1")
        for r in dst:
            if r in last_w:
                st, kind, ps = last_w[r]
                dist = state - st - 1
                if kind == "mfma" and not is_mfma(op):
                    need = {4: 8, 8: 12}[ps]
                    if dist < need: err("MFMA D->overwrite (WAW) of %s needs %d, has %d" % (r, need, dist))
                if kind == "mfma" and is_mfma(op):
                    c = regs(ops[3]) if len(ops) > 3 else []
                    if r not in c:
                        need = {4: 6, 8: 10}[ps]
                        if dist < need: err("MFMA WAW on %s (non chained) dist %d" % (r, dist))
            if is_valu(op) and r in last_srcC:
                st, ps = last_srcC[r]
                dist = state - st - 1
                need = {4: 3, 8: 7}[ps]
                if dist < need: err("MFMA SrcC read -> VALU write of %s needs %d, has %d" % (r, need, dist))
            if r in last_store and (is_valu(op) or is_mfma(op) or is_ds(op) or is_vmem(op)):
                dist = state - last_store[r] - 1
                if dist < 2: err("wide store data %s overwritten after %d states" % (r, dist))
        kind = "mfma" if is_mfma(op) else ("trans" if op.startswith(TRANS) else ("valu" if is_valu(op) else ("salu" if op.startswith("s_") else "mem")))
        for r in dst:
            last_w[r] = (state, kind, passes(op) if kind == "mfma" else 0)
        if is_mfma(op) and len(ops) > 3:
            for r in regs(ops[3]): last_srcC[r] = (state, passes(op))
        if (op.startswith("buffer_store_dwordx") or op.startswith("global_store_dwordx")) and op[-1] in "34":
            for r in regs(ops[0] if op.startswith("buffer") else ops[1]): last_store[r] = state
        if is_ds(op):
            lg.append((dst, line))
            if len(lg) > 64: pass
        elif op.startswith("s_load") or op.startswith("s_memtime") or op.startswith("s_memrealtime"):
            lg.append((dst, line))
        elif is_vmem(op) and not (op.startswith("buffer_wbl2") or op.startswith("buffer_inv")):
            vm.append((dst if "lds" not in mods.split() else [], line))
            if len(vm) > 63: err("more than 63 VMEM outstanding")
        state += 1
    if verbose:
        print("verify %s: %d lines, %d errors" % (name, len(lines), len(errs)))
        for e in errs[:40]: print("   ", e)
    return errs
```

```python
import sys, math
from asmlib import *
from verify import verify

C_SCALE = math.log2(math.e) / math.sqrt(128.0)
import struct
def f2u(x): return struct.unpack("<I", struct.pack("<f", x))[0]

class Q:
    def __init__(self, name, cap):
        self.name, self.cap, self.q = name, cap, []
    def issue(self, tag, t=0): self.q.append((tag, t))
    def need(self, tags, now=None, slack=None):
        idx = -1
        for i, (tg, t) in enumerate(self.q):
            if tg in tags: idx = i
        if idx < 0: return None
        if slack is not None:
            for i, (tg, t) in enumerate(self.q):
                if i > idx and t <= now - slack: idx = i
        n = len(self.q) - idx - 1
        n = min(n, self.cap)
        self.q = self.q[len(self.q) - n:] if n > 0 else []
        return "    s_waitcnt %s(%d)" % (self.name, n)
    def drain(self):
        self.q = []
        return "    s_waitcnt %s(0)" % self.name

O_ = lambda dblk, q: 16 * (dblk * 2 + q)
S_ = lambda par: 128 + 16 * par
P_ = lambda par: 160 + 8 * par
NM = lambda q: 176 + 16 * q
L_ = lambda q: 208 + q
VK = lambda s: 210 + s
VV = lambda d: 218 + d
DK = lambda i: 222 + i
DV = 226
LANE = 227
T0 = 228
DX = lambda n: 128 + n
DW = lambda i: 136 + i
RX = lambda buf, s: 140 + 4 * buf + s
RW = lambda blk: 148 + blk
QF = lambda q, s: 4 * (q * 8 + s)
KF = lambda s: 64 + 4 * s
VF = lambda i: 96 + 4 * i
PA = lambda sig, blk: 64 + 24 * sig + 4 * blk
PB = lambda sig, qb: 64 + 24 * sig + 16 + 4 * qb

def vr(b, n): return "v[%d:%d]" % (b, b + n - 1) if n > 1 else "v%d" % b
def ar(b, n): return "a[%d:%d]" % (b, b + n - 1) if n > 1 else "a%d" % b

SX, SW, SK, SV, SO = 4, 8, 12, 16, 20
sWAVE, sB, sH = 24, 25, 26
sKOFF, sVOFF, sKT, sVT, sLOOP, sXOFF, sWOFF = 27, 28, 29, 30, 31, 32, 33
sW4K, sW8K, sMODE, sT0, sT1 = 35, 36, 37, 38, 39
sSTAMP = 40
sWS, sDBG = 64, 66

LDS_K, LDS_V, LDS_X = 0, 65536, 131072
XBUF = (32768, 98304)
WBUF = (131072, 147456)

class Cfg:
    def __init__(self, **kw):
        self.stamps = False
        self.nt = True
        self.mapping = "batch"
        self.touch = False
        self.dma_pos = None
        self.ostore = ""
        self.__dict__.update(kw)

def stamp(a, cfg, i):
    if cfg.stamps:
        a("    s_memrealtime s[%d:%d]" % (sSTAMP + 2 * i, sSTAMP + 2 * i + 1))

def srd(a, s, lo, hi, nrec):
    a("    s_mov_b32 s%d, %s" % (s, lo))
    a("    s_mov_b32 s%d, %s" % (s + 1, hi))
    a("    s_mov_b32 s%d, %s" % (s + 2, nrec))
    a("    s_mov_b32 s%d, 0x20000" % (s + 3))

def decode_bh(a, cfg):
    if cfg.mapping == "batch":
        a("    s_and_b32 s%d, s2, 7" % sB)
        a("    s_lshr_b32 s%d, s2, 3" % sH)
    else:
        a("    s_and_b32 s%d, s2, 1" % sT0)
        a("    s_lshl_b32 s%d, s%d, 2" % (sT0, sT0))
        a("    s_bfe_u32 s%d, s2, 0x20003" % sB)
        a("    s_add_u32 s%d, s%d, s%d" % (sB, sB, sT0))
        a("    s_bfe_u32 s%d, s2, 0x20001" % sT0)
        a("    s_lshl_b32 s%d, s%d, 3" % (sT0, sT0))
        a("    s_lshr_b32 s%d, s2, 5" % sH)
        a("    s_add_u32 s%d, s%d, s%d" % (sH, sH, sT0))

def kv_dma(a, cfg, vm, slot, which, i, tag):
    nt = " nt" if cfg.nt else ""
    if which == "K":
        a("    buffer_load_dwordx4 v%d, s[%d:%d], s%d offen offset:%d%s lds" % (DK(i), SK, SK + 3, sKT, 1024 * i, nt))
    else:
        a("    buffer_load_dwordx4 v%d, s[%d:%d], s%d offen offset:%d%s lds" % (DV, SV, SV + 3, sVT, 1024 * i, nt))
    vm.issue(tag)

def kv_m0(which, slot):
    base = (LDS_K if which == "K" else LDS_V) + slot * 16384
    return "    s_add_u32 m0, s%d, %d" % (sW4K, base)

def kv_advance(which):
    if which == "K":
        return ["    s_min_u32 s%d, s%d, s60" % (sKT, sKOFF), "    s_add_u32 s%d, s%d, 16384" % (sKOFF, sKOFF)]
    return ["    s_max_i32 s%d, s%d, 0" % (sVT, sVOFF), "    s_min_u32 s%d, s%d, s60" % (sVT, sVT),
            "    s_add_u32 s%d, s%d, 16384" % (sVOFF, sVOFF)]

def issue_tile_plain(a, cfg, vm, T):
    for which in "KV":
        for l in kv_advance(which): a(l)
        a(kv_m0(which, T & 3))
        a("    s_nop 0")
        for i in range(4): kv_dma(a, cfg, vm, T & 3, which, i, ("tile", T))

def gen_qproj(a, cfg, vm):
    lg = Q("lgkmcnt", 15)
    def xdma(c):
        out = []
        buf = c & 1
        for n in range(8):
            if n % 4 == 0:
                out.append(("m0", "    s_add_u32 m0, s%d, %d" % (sW8K, XBUF[buf] + (n // 4) * 4096)))
            out.append(("dma", "    buffer_load_dwordx4 v%d, s[%d:%d], s%d offen offset:%d lds" % (DX(n), SX, SX + 3, sXOFF, 1024 * (n & 3)), ("x", c)))
        out.append(("m0", "    s_add_u32 m0, s%d, %d" % (sW4K, WBUF[buf])))
        for i in range(4):
            out.append(("dma", "    buffer_load_dwordx4 v%d, s[%d:%d], s%d offen offset:%d lds" % (DW(i), SW, SW + 3, sWOFF, 1024 * i), ("x", c)))
        out.append(("s", "    s_add_u32 s%d, s%d, 128" % (sXOFF, sXOFF)))
        out.append(("s", "    s_add_u32 s%d, s%d, 0x80000" % (sWOFF, sWOFF)))
        return out
    def emit(items):
        for it in items:
            a(it[1])
            if it[0] == "m0": a("    s_nop 0")
            if it[0] == "dma": vm.issue(it[2])
    def reads(n):
        c, s = divmod(n, 4); buf = c & 1; sig = n & 1
        out = []
        for qb in range(2):
            out.append(("    ds_read_b128 %s, v%d offset:%d" % (ar(PB(sig, qb), 4), RX(buf, s), qb * 4096), ("f", n)))
        for blk in range(4):
            for u in range(2):
                out.append(("    ds_read_b64_tr_b16 %s, v%d offset:%d" % (ar(PA(sig, blk) + 2 * u, 2), RW(blk), buf * 16384 + (16 * s + 4 * u) * 256), ("f", n)))
        return out
    a("    s_mov_b32 s%d, 0" % sXOFF)
    a("    s_mov_b32 s%d, 0" % sWOFF)
    emit(xdma(0)); emit(xdma(1))
    if cfg.touch:
        gen_touch(a, cfg, vm)
    pre = []
    for T in (0, 1):
        for which in "KV":
            for i in range(4):
                pre.append((T, which, i))
    def prefill_one():
        if not pre: return
        T, which, i = pre.pop(0)
        if i == 0:
            for l in kv_advance(which): a(l)
        a(kv_m0(which, T & 3)); a("    s_nop 0")
        kv_dma(a, cfg, vm, T & 3, which, i, ("tile", T))
    a(vm.need([("x", 0)]))
    a("    s_barrier")
    for (l, tg) in reads(0):
        a(l); lg.issue(tg)
    for n in range(36):
        c, s = divmod(n, 4); sig = n & 1
        w = lg.need([("f", n)])
        if w: a(w)
        fill = []
        if n + 1 < 36:
            rd = reads(n + 1)
        else:
            rd = []
        boundary = (s == 3 and n + 1 < 36)
        k = 0
        for blk in range(4):
            for qb in range(2):
                acc = vr(O_(blk, qb), 16)
                a("    v_mfma_f32_32x32x16_bf16 %s, %s, %s, %s" % (acc, ar(PA(sig, blk), 4), ar(PB(sig, qb), 4), "0" if n == 0 else acc))
                k += 1
                if boundary and k == 1:
                    w = vm.need([("x", c + 1)])
                    if w: a(w)
                    a("    s_barrier")
                    dm = xdma(c + 2) if c + 2 < 9 else []
                if (not boundary) or k >= 1:
                    take = 2 if k <= 5 else 0
                    for _ in range(take):
                        if rd:
                            l, tg = rd.pop(0); a(l); lg.issue(tg)
                if boundary and k >= 1 and dm:
                    cnt = 0
                    while dm and cnt < 2:
                        it = dm.pop(0); emit([it])
                        if it[0] == "dma": cnt += 1
                if (not boundary) and k in (6,) and s in (0, 1) and c >= 1:
                    prefill_one()
        if boundary:
            emit(dm)
        assert not rd
    while pre: prefill_one()

def gen_touch(a, cfg, vm):
    pass

def gen_slot(a, cfg, vm, lg, j, Tdma=None, first_pv=False, barrier=None):
    even = (j % 2 == 0)
    do_qk = 0 <= j + 1 <= 127
    do_pv = 0 <= j - 1 <= 127
    base = 0 if even else 16
    je = j if even else j - 1
    mk = (je + 2) // 2
    mv = je // 2
    rd = {}
    if 0 <= mk <= 63:
        Tk = mk >> 1
        for s in range(8):
            rd.setdefault(2 * s + 2, []).append(("    ds_read_b128 %s, v%d offset:%d" % (ar(KF(s), 4), VK(s), (Tk & 3) * 16384 + (mk & 1) * 8192), ("K", mk, s)))
    if 0 <= mv <= 63:
        Tv = (mv + 1) >> 1
        for i in range(8):
            t, dblk = i >> 2, i & 3
            for u in range(2):
                off = (Tv & 3) * 16384 + (((mv + 1) & 1) * 32 + 16 * t + 8 * u) * 256
                rd.setdefault(2 * i + 11 + u, []).append(("    ds_read_b64_tr_b16 %s, v%d offset:%d" % (ar(VF(i) + 2 * u, 2), VV(dblk), off), ("V", mv, i)))
    for p in range(16):
        gp = base + p
        now = j * 16 + p
        if p < 8:
            if do_qk:
                jj = j + 1; q = jj & 1; m = jj >> 1
                w = lg.need([("K", m, p)], now, 3)
                if w: a(w)
                D = vr(S_(q), 16)
                C = D if p > 0 else ("0" if jj < 2 else vr(NM(q), 16))
                a("    v_mfma_f32_32x32x16_bf16 %s, %s, %s, %s" % (D, ar(KF(p), 4), ar(QF(q, p), 4), C))
        else:
            if do_pv:
                jj = j - 1; q = jj & 1; m = jj >> 1; i = p - 8; t, dblk = i >> 2, i & 3
                w = lg.need([("V", m, i)], now, 3)
                if w: a(w)
                D = vr(O_(dblk, q), 16)
                C = "0" if (jj < 2 and t == 0) else D
                a("    v_mfma_f32_32x32x16_bf16 %s, %s, %s, %s" % (D, ar(VF(i), 4), vr(P_(q) + 4 * t, 4), C))
        def elem(pp):
            return (j, pp + 4) if pp < 12 else (j + 1, pp - 12)
        cur = elem(p)
        prev = elem(p - 1) if p > 0 else (j, 3)
        okc = 0 <= cur[0] <= 127 and not (cur[0] < 2 and cur[1] < 4 and False)
        if sm_active(cur):
            r = S_(cur[0] & 1) + cur[1]
            a("    v_exp_f32 v%d, v%d" % (r, r))
        for (l, tg) in rd.get(gp, []):
            a(l); lg.issue(tg, now)
        if sm_active(prev):
            q = prev[0] & 1; r = S_(q) + prev[1]
            a("    v_add_f32 v%d, v%d, v%d" % (L_(q), L_(q), r))
            if prev[1] & 1:
                a("    v_cvt_pk_bf16_f32 v%d, v%d, v%d" % (P_(q) + prev[1] // 2, r - 1, r))
        if Tdma is not None:
            for l in Tdma.get(p, []):
                if isinstance(l, tuple):
                    a(l[0]); vm.issue(l[1])
                else:
                    a(l)

SM_LO = 0
def sm_active(e):
    j, k = e
    if j < 0 or j > 127: return False
    if j == 0 and k < 4: return False
    return True

def dma_plan(cfg, T):
    nt = " nt" if cfg.nt else ""
    slot = T & 3
    plan = {0: {}, 1: {}, 2: {}, 3: {}}
    kpos = cfg.dma_pos[0] if cfg.dma_pos else [(0, 0), (0, 1), (1, 12), (1, 14)]
    vpos = cfg.dma_pos[1] if cfg.dma_pos else [(2, 0), (2, 1), (3, 12), (3, 14)]
    for which, poss in (("K", kpos), ("V", vpos)):
        for i, (so, p) in enumerate(poss):
            lst = plan[so].setdefault(p, [])
            if i == 0:
                lst += kv_advance(which)
                lst.append(kv_m0(which, slot))
                lst.append("    s_nop 0")
            if which == "K":
                l = "    buffer_load_dwordx4 v%d, s[%d:%d], s%d offen offset:%d%s lds" % (DK(i), SK, SK + 3, sKT, 1024 * i, nt)
            else:
                l = "    buffer_load_dwordx4 v%d, s[%d:%d], s%d offen offset:%d%s lds" % (DV, SV, SV + 3, sVT, 1024 * i, nt)
            lst.append((l, ("tile", T)))
    return plan

def gen_region(a, cfg, vm, T, dma_tile):
    lg = Q("lgkmcnt", 15)
    w = vm.need([("tile", T)])
    if w: a(w)
    a("    s_barrier")
    plan = dma_plan(cfg, dma_tile) if dma_tile is not None else None
    for so in range(4):
        j = 4 * T - 2 + so
        if j > 128: break
        gen_slot(a, cfg, vm, lg, j, plan[so] if plan else None)
    assert not lg.q or T == 32, lg.q

def gen_attn_prologue(a, cfg, vm):
    lg = Q("lgkmcnt", 15)
    w = vm.need([("tile", 0)])
    if w: a(w)
    a("    s_barrier")
    issue_tile_plain(a, cfg, vm, 2)
    issue_tile_plain(a, cfg, vm, 3)
    for s in range(8):
        a("    ds_read_b128 %s, v%d offset:0" % (ar(KF(s), 4), VK(s))); lg.issue(("K", 0, s))
    return lg

def gen_q_convert(a):
    a("    s_mov_b32 s%d, 0x%08x" % (sT0, f2u(C_SCALE)))
    for blk in range(4):
        for qb in range(2):
            b = O_(blk, qb)
            for r in range(0, 16, 2):
                a("    v_pk_mul_f32 v[%d:%d], v[%d:%d], s[%d:%d] op_sel_hi:[1,0]" % (b + r, b + r + 1, b + r, b + r + 1, sT0, sT0 + 1))
            for t in range(2):
                for k in range(4):
                    a("    v_cvt_pk_bf16_f32 v%d, v%d, v%d" % (T0 + k, b + 8 * t + 2 * k, b + 8 * t + 2 * k + 1))
                for k in range(4):
                    a("    v_accvgpr_write_b32 a%d, v%d" % (QF(qb, 2 * blk + t) + k, T0 + k))

def gen_first_max(a):
    a("    s_cmp_lg_u32 s%d, 0" % sMODE)
    a("    s_cbranch_scc1 L_have_max")
    for q in range(2):
        b = S_(q)
        a("    v_max3_f32 v%d, v%d, v%d, v%d" % (T0, b, b + 1, b + 2))
        for k in range(3, 15, 2):
            a("    v_max3_f32 v%d, v%d, v%d, v%d" % (T0, T0, b + k, b + k + 1))
        a("    v_max_f32 v%d, v%d, v%d" % (T0, T0, b + 15))
        a("    v_mov_b32 v%d, v%d" % (T0 + 1, T0))
        a("    s_nop 1")
        a("    v_permlane32_swap_b32 v%d, v%d" % (T0, T0 + 1))
        a("    v_max_f32 v%d, v%d, v%d" % (T0, T0, T0 + 1))
        for k in range(16):
            a("    v_sub_f32 v%d, 0, v%d" % (NM(q) + k, T0))
    a("L_have_max:")
    for q in range(2):
        for k in range(16):
            a("    v_add_f32 v%d, v%d, v%d" % (S_(q) + k, S_(q) + k, NM(q) + k))

def gen_attention(a, cfg):
    vm = Q("vmcnt", 63)
    return vm

def gen_kernel_A(cfg):
    a = Asm()
    segs = {}
    a(kernel_begin(cfg.nameA))
    a("    s_cmp_ge_u32 s2, 256")
    a("    s_cbranch_scc1 L_doneA")
    stamp(a, cfg, 0)
    a("    s_load_dwordx4 s[68:71], s[0:1], 0")
    a("    s_load_dwordx4 s[72:75], s[0:1], 16")
    a("    s_load_dwordx4 s[64:67], s[0:1], 48")
    decode_bh(a, cfg)
    a("    v_lshrrev_b32 v1, 6, v0")
    a("    v_and_b32 v%d, 63, v0" % LANE)
    a("    v_readfirstlane_b32 s%d, v1" % sWAVE)
    a("    s_nop 3")
    a("    s_lshl_b32 s%d, s%d, 12" % (sW4K, sWAVE))
    a("    s_lshl_b32 s%d, s%d, 13" % (sW8K, sWAVE))
    a("    s_mov_b32 s%d, 0" % sMODE)
    a("    s_mov_b32 s60, %d" % (524288 - 4096))
    L = LANE
    t = T0
    a("    v_lshrrev_b32 v%d, 4, v%d" % (t, L))
    a("    v_and_b32 v%d, 15, v%d" % (t + 1, L))
    for i in range(4):
        a("    v_add_u32 v%d, %d, v%d" % (t + 2, 4 * i, t))
        a("    v_xor_b32 v%d, v%d, v%d" % (t + 2, t + 2, t + 1))
        a("    v_lshlrev_b32 v%d, 4, v%d" % (t + 2, t + 2))
        a("    v_lshl_add_u32 v%d, v%d, 8, v%d" % (DK(i), t, t + 2))
    a("    v_lshlrev_b32 v%d, 2, v%d" % (t + 2, t))
    a("    v_xor_b32 v%d, v%d, v%d" % (t + 2, t + 2, t + 1))
    a("    v_lshlrev_b32 v%d, 4, v%d" % (t + 2, t + 2))
    a("    v_lshl_add_u32 v%d, v%d, 8, v%d" % (DV, t, t + 2))
    a("    s_lshl_b32 s%d, s%d, 17" % (sT0, sWAVE))
    for i in range(4):
        a("    v_lshl_add_u32 v%d, v%d, 13, v%d" % (DW(i), t, t + 2))
        a("    v_add_u32 v%d, s%d, v%d" % (DW(i), sT0, DW(i)))
        if i: a("    v_add_u32 v%d, %d, v%d" % (DW(i), i * (4 * 8192 - 1024), DW(i)))
    a("    v_lshrrev_b32 v%d, 3, v%d" % (t + 3, L))
    a("    v_and_b32 v%d, 7, v%d" % (t + 4, L))
    a("    s_lshl_b32 s%d, s%d, 6" % (sT0, sWAVE))
    a("    v_add_u32 v%d, s%d, v%d" % (t + 3, sT0, t + 3))
    a("    s_movk_i32 s%d, 1152" % sT1)
    for n in range(8):
        a("    v_add_u32 v%d, %d, v%d" % (t + 5, (4 * n) & 7, t))
        a("    v_and_b32 v%d, 7, v%d" % (t + 5, t + 5))
        a("    v_xor_b32 v%d, v%d, v%d" % (t + 5, t + 5, t + 4))
        a("    v_lshlrev_b32 v%d, 4, v%d" % (t + 5, t + 5))
        a("    v_add_u32 v%d, %d, v%d" % (t + 6, 8 * n, t + 3))
        a("    v_mad_u32_u24 v%d, v%d, s%d, v%d" % (DX(n), t + 6, sT1, t + 5))
        if n & 3: a("    v_subrev_u32 v%d, %d, v%d" % (DX(n), (n & 3) * 1024, DX(n)))
    a("    v_and_b32 v%d, 31, v%d" % (t + 3, L))
    a("    v_lshrrev_b32 v%d, 5, v%d" % (t + 4, L))
    a("    v_xor_b32 v%d, v%d, v%d" % (t + 5, t + 4, t + 1))
    for s in range(8):
        a("    v_xor_b32 v%d, %d, v%d" % (t + 6, 2 * s, t + 5))
        a("    v_lshlrev_b32 v%d, 4, v%d" % (t + 6, t + 6))
        a("    v_lshl_add_u32 v%d, v%d, 8, v%d" % (VK(s), t + 3, t + 6))
    a("    v_bfe_u32 v%d, v%d, 1, 3" % (t + 5, t + 3))
    a("    v_xor_b32 v%d, v%d, v%d" % (t + 5, t + 5, t + 4))
    for s in range(4):
        a("    v_xor_b32 v%d, %d, v%d" % (t + 6, 2 * s, t + 5))
        a("    v_lshlrev_b32 v%d, 4, v%d" % (t + 6, t + 6))
        a("    v_lshl_add_u32 v%d, v%d, 7, v%d" % (t + 6, t + 3, t + 6))
        a("    v_add_u32 v%d, s%d, v%d" % (t + 6, sW8K, t + 6))
        for buf in range(2):
            a("    v_add_u32 v%d, %d, v%d" % (RX(buf, s), XBUF[buf], t + 6))
    a("    v_bfe_u32 v%d, v%d, 2, 2" % (t + 5, L))
    a("    v_and_b32 v%d, 3, v%d" % (t + 6, L))
    a("    v_bfe_u32 v%d, v%d, 4, 1" % (t + 7, L))
    a("    v_lshl_add_u32 v%d, v%d, 2, v%d" % (t + 8, t + 4, t + 5))
    a("    v_lshlrev_b32 v%d, 8, v%d" % (t + 8, t + 8))
    a("    v_lshl_add_u32 v%d, v%d, 5, v%d" % (t + 8, t + 7, t + 8))
    a("    v_lshl_add_u32 v%d, v%d, 3, v%d" % (t + 9, t + 6, t + 8))
    for d in range(4):
        a("    v_xor_b32 v%d, %d, v%d" % (t + 10, d, t + 5))
        a("    v_lshl_add_u32 v%d, v%d, 6, v%d" % (t + 10, t + 10, t + 9))
        a("    v_add_u32 v%d, %d, v%d" % (VV(d), LDS_V, t + 10))
    a("    v_lshl_add_u32 v%d, v%d, 3, v%d" % (t + 8, t + 4, t + 5))
    a("    v_lshlrev_b32 v%d, 8, v%d" % (t + 8, t + 8))
    a("    v_lshl_add_u32 v%d, v%d, 5, v%d" % (t + 8, t + 7, t + 8))
    a("    v_and_b32 v%d, 1, v%d" % (t + 9, t + 6))
    a("    v_lshl_add_u32 v%d, v%d, 4, v%d" % (t + 8, t + 9, t + 8))
    a("    v_lshrrev_b32 v%d, 1, v%d" % (t + 9, t + 6))
    a("    v_lshl_add_u32 v%d, v%d, 3, v%d" % (t + 8, t + 9, t + 8))
    for d in range(4):
        a("    v_xor_b32 v%d, %d, v%d" % (t + 10, d, t + 5))
        a("    v_lshl_add_u32 v%d, v%d, 6, v%d" % (t + 10, t + 10, t + 8))
        a("    v_add_u32 v%d, %d, v%d" % (RW(d), WBUF[0], t + 10))
    a("    s_waitcnt lgkmcnt(0)")
    a("    s_mul_i32 s%d, s%d, 276480" % (sT0, sB))
    a("    s_add_u32 s68, s68, s%d" % sT0)
    a("    s_addc_u32 s69, s69, 0")
    srd(a, SX, "s68", "s69", "276480")
    a("    s_lshl_b32 s%d, s%d, 8" % (sT0, sH))
    a("    s_add_u32 s74, s74, s%d" % sT0)
    a("    s_addc_u32 s75, s75, 0")
    a("    s_sub_u32 s%d, 4718592, s%d" % (sT1, sT0))
    srd(a, SW, "s74", "s75", "s%d" % sT1)
    a("    s_lshl_b32 s%d, s%d, 5" % (sT0, sB))
    a("    s_add_u32 s%d, s%d, s%d" % (sT0, sT0, sH))
    a("    s_lshr_b32 s%d, s%d, 13" % (sT1, sT0))
    a("    s_lshl_b32 s%d, s%d, 19" % (sT0, sT0))
    a("    s_add_u32 s70, s70, s%d" % sT0)
    a("    s_addc_u32 s71, s71, s%d" % sT1)
    srd(a, SK, "s70", "s71", "524288")
    a("    s_add_u32 s72, s72, s%d" % sT0)
    a("    s_addc_u32 s73, s73, s%d" % sT1)
    srd(a, SV, "s72", "s73", "524288")
    a("    s_lshl_b32 s%d, s%d, 21" % (sT0, sB))
    a("    s_lshl_b32 s%d, s%d, 13" % (sT1, sH))
    a("    s_add_u32 s%d, s%d, s%d" % (sT0, sT0, sT1))
    a("    s_add_u32 s76, s66, s%d" % sT0)
    a("    s_addc_u32 s77, s67, 0")
    srd(a, SO, "s76", "s77", "0x200000")
    def reset_offsets():
        a("    s_mov_b32 s%d, s%d" % (sKOFF, sW4K))
        a("    s_sub_u32 s%d, s%d, 8192" % (sVOFF, sW4K))
    reset_offsets()
    head = a.lines; a.lines = []
    vm = Q("vmcnt", 63)
    gen_qproj(a, cfg, vm)
    stamp(a, cfg, 1)
    qp = a.lines; a.lines = []
    lg = gen_attn_prologue(a, cfg, vm)
    a("    s_nop 7")
    a("    s_nop 3")
    gen_q_convert(a)
    a("L_attn_go:")
    a("    v_mov_b32 v%d, 0" % L_(0))
    a("    v_mov_b32 v%d, 0" % L_(1))
    for jj in range(2):
        for s in range(8):
            w = lg.need([("K", 0, s)])
            if w: a(w)
            D = vr(S_(jj), 16)
            a("    v_mfma_f32_32x32x16_bf16 %s, %s, %s, %s" % (D, ar(KF(s), 4), ar(QF(jj, s), 4), "0" if s == 0 else D))
    a("    s_nop 7")
    a("    s_nop 3")
    gen_first_max(a)
    b = S_(0)
    for k in range(4): a("    v_exp_f32 v%d, v%d" % (b + k, b + k))
    a("    s_nop 0")
    for k in range(4): a("    v_add_f32 v%d, v%d, v%d" % (L_(0), L_(0), b + k))
    a("    v_cvt_pk_bf16_f32 v%d, v%d, v%d" % (P_(0), b, b + 1))
    a("    v_cvt_pk_bf16_f32 v%d, v%d, v%d" % (P_(0) + 1, b + 2, b + 3))
    global NOQK
    gen_slot_noqk(a, cfg, vm, lg, 0)
    gen_slot(a, cfg, vm, lg, 1)
    assert not lg.q, lg.q
    stamp(a, cfg, 2)
    gen_region(a, cfg, vm, 1, 4)
    pro = a.lines; a.lines = []
    a("    s_mov_b32 s%d, 7" % sLOOP)
    pro.append(a.lines.pop())
    def body(T0_):
        a("L_loop:")
        for T in range(T0_, T0_ + 4):
            gen_region(a, cfg, vm, T, T + 3)
        a("    s_sub_u32 s%d, s%d, 1" % (sLOOP, sLOOP))
        a("    s_cmp_lg_u32 s%d, 0" % sLOOP)
        a("    s_cbranch_scc1 L_loop")
    body(2)
    b1 = a.lines; a.lines = []
    body(6); b2 = a.lines; a.lines = []
    assert b1 == b2, "loop body not steady"
    vm.q = [(("tile", tg[1] + 20), t) for (tg, t) in vm.q]
    for T in (30, 31, 32):
        gen_region(a, cfg, vm, T, None)
    stamp(a, cfg, 3)
    epi = a.lines; a.lines = []
    a("    s_nop 7")
    for q in range(2):
        a("    v_mov_b32 v%d, v%d" % (T0 + q, L_(q)))
    a("    s_nop 1")
    for q in range(2):
        a("    v_permlane32_swap_b32 v%d, v%d" % (L_(q), T0 + q))
    for q in range(2):
        a("    v_add_f32 v%d, v%d, v%d" % (L_(q), L_(q), T0 + q))
    a("    s_cmp_lg_u32 s%d, 0" % sMODE)
    a("    s_cbranch_scc1 L_checked")
    a("    s_mov_b32 s%d, 0x53800000" % sT0)
    a("    v_cmp_ngt_f32 vcc, s%d, v%d" % (sT0, L_(0)))
    a("    v_cmp_ngt_f32 s[62:63], s%d, v%d" % (sT0, L_(1)))
    a("    s_nop 3")
    a("    s_or_b64 vcc, vcc, s[62:63]")
    a("    s_cmp_lg_u64 vcc, 0")
    a("    s_cselect_b32 s%d, 1, 0" % sT0)
    a("    v_mov_b32 v%d, s%d" % (T0, sT0))
    a("    v_lshlrev_b32 v%d, 2, v%d" % (T0 + 1, LANE))
    a("    v_mov_b32 v%d, s%d" % (T0 + 1, sWAVE))
    a("    v_lshlrev_b32 v%d, 2, v%d" % (T0 + 1, T0 + 1))
    a("    v_add_u32 v%d, %d, v%d" % (T0 + 1, LDS_X, T0 + 1))
    a("    ds_write_b32 v%d, v%d" % (T0 + 1, T0))
    a("    s_waitcnt lgkmcnt(0)")
    a("    s_barrier")
    a("    v_mov_b32 v%d, %d" % (T0 + 1, LDS_X))
    a("    ds_read_b128 v[%d:%d], v%d" % (T0 + 4, T0 + 7, T0 + 1))
    a("    s_waitcnt lgkmcnt(0)")
    a("    v_or_b32 v%d, v%d, v%d" % (T0 + 4, T0 + 4, T0 + 5))
    a("    v_or_b32 v%d, v%d, v%d" % (T0 + 6, T0 + 6, T0 + 7))
    a("    v_or_b32 v%d, v%d, v%d" % (T0 + 4, T0 + 4, T0 + 6))
    a("    s_nop 0")
    a("    v_readfirstlane_b32 s%d, v%d" % (sT0, T0 + 4))
    a("    s_nop 3")
    a("    s_cmp_lg_u32 s%d, 0" % sT0)
    a("    s_cbranch_scc1 L_fallback")
    a("L_checked:")
    for q in range(2):
        a("    v_rcp_f32 v%d, v%d" % (L_(q), L_(q)))
    a("    v_lshlrev_b32 v%d, 4, v%d" % (T0 + 8, LANE))
    a("    v_add_u32 v%d, 4096, v%d" % (T0 + 9, T0 + 8))
    a("    s_lshl_b32 s%d, s%d, 19" % (sT0, sWAVE))
    a("    s_add_u32 s%d, s%d, 262144" % (sT1, sT0))
    tb = 0
    for q in range(2):
        for dblk in range(4):
            b = O_(dblk, q)
            for r in range(0, 16, 2):
                a("    v_pk_mul_f32 v[%d:%d], v[%d:%d], v[%d:%d] op_sel_hi:[1,0]" % (b + r, b + r + 1, b + r, b + r + 1, L_(q) & ~1, (L_(q) & ~1) + 1) if q == 0 else
                  "    v_pk_mul_f32 v[%d:%d], v[%d:%d], v[%d:%d] op_sel:[0,1] op_sel_hi:[1,1]" % (b + r, b + r + 1, b + r, b + r + 1, L_(0), L_(0) + 1))
            for t in range(2):
                tmp = 128 + 4 * (tb & 7); tb += 1
                for k in range(4):
                    a("    v_cvt_pk_bf16_f32 v%d, v%d, v%d" % (tmp + k, b + 8 * t + 2 * k, b + 8 * t + 2 * k + 1))
                ds = 2 * dblk + t
                a("    buffer_store_dwordx4 v[%d:%d], v%d, s[%d:%d], s%d offen offset:%d%s" % (tmp, tmp + 3, T0 + 8 + (ds >> 2), SO, SO + 3, sT0 if q == 0 else sT1, (ds & 3) * 1024, cfg.ostore))
    stamp(a, cfg, 4)
    if cfg.stamps:
        a("    s_waitcnt vmcnt(0)")
        stamp(a, cfg, 5)
        a("    s_waitcnt lgkmcnt(0)")
        a("    s_lshl_b32 s%d, s2, 6" % sT0)
        a("    s_add_u32 s62, s66, 0x10000000")
        a("    s_addc_u32 s63, s67, 0")
        a("    s_add_u32 s62, s62, s%d" % sT0)
        a("    s_addc_u32 s63, s63, 0")
        a("    v_cmp_eq_u32 vcc, 0, v%d" % LANE)
        a("    s_cmp_eq_u32 s%d, 0" % sWAVE)
        a("    s_cbranch_scc0 L_doneA")
        a("    s_and_saveexec_b64 s[38:39], vcc")
        a("    v_mov_b32 v0, 0")
        for i in range(6):
            a("    v_mov_b32 v2, s%d" % (sSTAMP + 2 * i))
            a("    v_mov_b32 v3, s%d" % (sSTAMP + 2 * i + 1))
            a("    global_store_dwordx2 v0, v[2:3], s[62:63] offset:%d" % (8 * i))
            a("    s_nop 1")
    a("L_doneA:")
    a("    s_endpgm")
    fin = a.lines; a.lines = []
    a("L_fallback:")
    gen_fallback(a, cfg, reset_offsets)
    fb = a.lines; a.lines = []
    verify(head + qp + pro + b1 + b1 + epi + fin, "kernelA")
    verify(fb + pro[pro.index("L_attn_go:"):], "kernelA-fb")
    return "\n".join(head + qp + pro + b1 + epi + fin + fb) + "\n"

def gen_slot_noqk(a, cfg, vm, lg, j):
    b = Asm()
    gen_slot(b, cfg, vm, lg, j)
    for l in b.lines:
        if l.strip().startswith("v_mfma") and ("v[%d:" % S_((j + 1) & 1)) in l.split(",")[0]:
            continue
        a(l)

def gen_fallback(a, cfg, reset_offsets):
    nt = " nt" if cfg.nt else ""
    a("    s_mov_b32 s%d, 1" % sMODE)
    a("    v_mov_b32 v%d, 0xff800000" % L_(0))
    a("    v_mov_b32 v%d, 0xff800000" % L_(1))
    a("    s_mov_b32 s%d, s%d" % (sKT, sW4K))
    a("    s_mov_b32 s%d, 32" % sLOOP)
    a("L_fb_loop:")
    a("    s_barrier")
    a("    s_mov_b32 m0, s%d" % sW4K)
    a("    s_nop 0")
    for i in range(4):
        a("    buffer_load_dwordx4 v%d, s[%d:%d], s%d offen offset:%d%s lds" % (DK(i), SK, SK + 3, sKT, 1024 * i, nt))
    a("    s_add_u32 s%d, s%d, 16384" % (sKT, sKT))
    a("    s_waitcnt vmcnt(0)")
    a("    s_barrier")
    for kb in range(2):
        for s in range(8):
            a("    ds_read_b128 %s, v%d offset:%d" % (ar(KF(s), 4), VK(s), kb * 8192))
        a("    s_waitcnt lgkmcnt(0)")
        for q in range(2):
            D = vr(S_(q), 16)
            for s in range(8):
                a("    v_mfma_f32_32x32x16_bf16 %s, %s, %s, %s" % (D, ar(KF(s), 4), ar(QF(q, s), 4), "0" if s == 0 else D))
        a("    s_nop 15")
        for q in range(2):
            for k in range(0, 16, 2):
                a("    v_max3_f32 v%d, v%d, v%d, v%d" % (L_(q), L_(q), S_(q) + k, S_(q) + k + 1))
    a("    s_sub_u32 s%d, s%d, 1" % (sLOOP, sLOOP))
    a("    s_cmp_lg_u32 s%d, 0" % sLOOP)
    a("    s_cbranch_scc1 L_fb_loop")
    for q in range(2):
        a("    v_mov_b32 v%d, v%d" % (T0, L_(q)))
        a("    s_nop 1")
        a("    v_permlane32_swap_b32 v%d, v%d" % (L_(q), T0))
        a("    v_max_f32 v%d, v%d, v%d" % (T0, T0, L_(q)))
        for k in range(16):
            a("    v_sub_f32 v%d, 0, v%d" % (NM(q) + k, T0))
    a("    s_barrier")
    reset_offsets()
    vm = Q("vmcnt", 63)
    for T in range(4): issue_tile_plain(a, cfg, vm, T)
    a("    s_waitcnt vmcnt(16)")
    a("    s_barrier")
    for s in range(8):
        a("    ds_read_b128 %s, v%d offset:0" % (ar(KF(s), 4), VK(s)))
    a("    s_branch L_attn_go")


B_ACC = lambda nu, u: 4 * (nu * 3 + u)
B_OF = lambda buf, u: 72 + 12 * buf + 4 * u
NOB = 4
B_WF = lambda buf, nu: 128 + 24 * buf + 4 * nu
B_VO = lambda u: 180 + u
B_D64 = lambda n: 184 + n
B_D32 = lambda n: 188 + n
B_R64 = lambda nu: 190 + nu
B_R32 = lambda nu: 194 + nu
B_T = 200
NSLOT = 6
def gen_outproj_body(a, cfg, sBb, sIdx):
    L = LANE; t = B_T
    a("    s_mul_i32 s%d, s%d, 43" % (sT0, sIdx))
    a("    s_lshr_b32 s%d, s%d, 8" % (sT0, sT0))
    a("    s_mul_i32 s%d, s%d, 6" % (sT1, sT0))
    a("    s_sub_u32 s%d, s%d, s%d" % (sT1, sIdx, sT1))
    a("    s_mul_i32 s27, s%d, 48" % sT0)
    a("    s_mul_i32 s28, s%d, 96" % sT1)
    a("    s_and_b32 s29, s%d, 1" % sT1)
    a("    s_lshl_b32 s30, s29, 5")
    a("    s_add_u32 s30, s30, s28")
    a("    s_lshl_b32 s31, s29, 6")
    a("    s_sub_u32 s31, 64, s31")
    a("    s_add_u32 s31, s31, s28")
    srd(a, SW, "s68", "s69", "4718592")
    a("    s_lshl_b32 s%d, s%d, 21" % (sT0, sBb))
    a("    s_add_u32 s76, s66, s%d" % sT0)
    a("    s_addc_u32 s77, s67, 0")
    srd(a, SO, "s76", "s77", "0x200000")
    a("    s_mul_i32 s%d, s%d, 276480" % (sT0, sBb))
    a("    s_add_u32 s76, s70, s%d" % sT0)
    a("    s_addc_u32 s77, s71, 0")
    srd(a, SX, "s76", "s77", "276480")
    a("    v_and_b32 v%d, 15, v%d" % (t, L))
    a("    v_lshrrev_b32 v%d, 4, v%d" % (t + 1, L))
    a("    v_lshrrev_b32 v%d, 1, v%d" % (t + 2, t + 1))
    a("    v_and_b32 v%d, 1, v%d" % (t + 3, t + 1))
    for u in range(3):
        a("    v_add_u32 v%d, s27, v%d" % (t + 4, t))
        if u: a("    v_add_u32 v%d, %d, v%d" % (t + 4, 16 * u, t + 4))
        a("    v_lshrrev_b32 v%d, 5, v%d" % (t + 5, t + 4))
        a("    v_lshlrev_b32 v%d, 18, v%d" % (t + 5, t + 5))
        a("    v_and_b32 v%d, 31, v%d" % (t + 4, t + 4))
        a("    v_lshl_add_u32 v%d, v%d, 5, v%d" % (t + 4, t + 3, t + 4))
        a("    v_lshl_add_u32 v%d, v%d, 4, v%d" % (t + 5, t + 4, t + 5))
        a("    v_lshl_add_u32 v%d, v%d, 10, v%d" % (B_VO(u), t + 2, t + 5))
    a("    s_movk_i32 s%d, 1152" % sT1)
    a("    v_lshrrev_b32 v%d, 3, v%d" % (t + 4, L))
    a("    v_and_b32 v%d, 7, v%d" % (t + 5, L))
    a("    v_bfe_u32 v%d, v%d, 4, 2" % (t + 6, L))
    a("    v_lshlrev_b32 v%d, 1, v%d" % (t + 6, t + 6))
    a("    v_xor_b32 v%d, v%d, v%d" % (t + 5, t + 5, t + 6))
    a("    v_lshlrev_b32 v%d, 4, v%d" % (t + 5, t + 5))
    a("    s_lshl_b32 s%d, s30, 1" % sT0)
    a("    v_add_u32 v%d, s%d, v%d" % (t + 5, sT0, t + 5))
    for n in range(4):
        a("    v_add_u32 v%d, %d, v%d" % (t + 6, 8 * n, t + 4))
        a("    v_mad_u32_u24 v%d, v%d, s%d, v%d" % (B_D64(n), t + 6, sT1, t + 5))
        if n: a("    v_subrev_u32 v%d, %d, v%d" % (B_D64(n), n * 1024, B_D64(n)))
    a("    v_lshrrev_b32 v%d, 2, v%d" % (t + 4, L))
    a("    v_and_b32 v%d, 3, v%d" % (t + 5, L))
    a("    v_bfe_u32 v%d, v%d, 4, 1" % (t + 6, L))
    a("    v_lshlrev_b32 v%d, 1, v%d" % (t + 6, t + 6))
    a("    v_xor_b32 v%d, v%d, v%d" % (t + 5, t + 5, t + 6))
    a("    v_lshlrev_b32 v%d, 4, v%d" % (t + 5, t + 5))
    a("    s_lshl_b32 s%d, s31, 1" % sT0)
    a("    v_add_u32 v%d, s%d, v%d" % (t + 5, sT0, t + 5))
    for n in range(2):
        a("    v_add_u32 v%d, %d, v%d" % (t + 6, 16 * n, t + 4))
        a("    v_mad_u32_u24 v%d, v%d, s%d, v%d" % (B_D32(n), t + 6, sT1, t + 5))
        if n: a("    v_subrev_u32 v%d, %d, v%d" % (B_D32(n), n * 1024, B_D32(n)))
    a("    s_mul_i32 s32, s%d, 40960" % sWAVE)
    a("    v_bfe_u32 v%d, v%d, 2, 2" % (t + 4, L))
    a("    v_and_b32 v%d, 3, v%d" % (t + 5, L))
    a("    v_lshl_add_u32 v%d, v%d, 2, v%d" % (t + 6, t + 3, t + 4))
    a("    v_lshl_add_u32 v%d, v%d, 4, v%d" % (t + 6, t + 2, t + 6))
    a("    v_lshrrev_b32 v%d, 1, v%d" % (t + 7, t + 4))
    a("    v_lshl_add_u32 v%d, v%d, 1, v%d" % (t + 7, t + 3, t + 7))
    for nu in range(4):
        a("    v_xor_b32 v%d, %d, v%d" % (t + 8, nu, t + 7))
        a("    v_lshlrev_b32 v%d, 5, v%d" % (t + 8, t + 8))
        a("    v_lshl_add_u32 v%d, v%d, 7, v%d" % (t + 8, t + 6, t + 8))
        a("    v_lshl_add_u32 v%d, v%d, 3, v%d" % (t + 8, t + 5, t + 8))
        a("    v_add_u32 v%d, s32, v%d" % (B_R64(nu), t + 8))
    for nu in range(2):
        a("    v_xor_b32 v%d, %d, v%d" % (t + 8, nu, t + 3))
        a("    v_lshlrev_b32 v%d, 5, v%d" % (t + 8, t + 8))
        a("    v_lshl_add_u32 v%d, v%d, 6, v%d" % (t + 8, t + 6, t + 8))
        a("    v_lshl_add_u32 v%d, v%d, 3, v%d" % (t + 8, t + 5, t + 8))
        a("    v_add_u32 v%d, s32, v%d" % (t + 8, t + 8))
        a("    v_add_u32 v%d, 4096, v%d" % (B_R32(nu), t + 8))
    a("    s_mul_i32 s33, s%d, %d" % (sWAVE, 1024 * 1152))
    a("    s_lshl_b32 s34, s%d, 16" % sWAVE)
    vm = Q("vmcnt", 63); lg = Q("lgkmcnt", 15)
    def wdma(ks):
        out = []
        slot = ks % NSLOT
        out.append("    s_add_u32 m0, s32, %d" % (slot * 6144))
        out.append("    s_nop 0")
        for n in range(4):
            out.append(("    buffer_load_dwordx4 v%d, s[%d:%d], s33 offen offset:%d lds" % (B_D64(n), SW, SW + 3, n * 1024), ("w", ks)))
        out.append("    s_add_u32 m0, s32, %d" % (slot * 6144 + 4096))
        out.append("    s_nop 0")
        for n in range(2):
            out.append(("    buffer_load_dwordx4 v%d, s[%d:%d], s33 offen offset:%d lds" % (B_D32(n), SW, SW + 3, n * 1024), ("w", ks)))
        out.append("    s_add_u32 s33, s33, %d" % (32 * 1152))
        return out
    def oload(ks):
        out = []
        for u in range(3):
            out.append(("    buffer_load_dwordx4 %s, v%d, s[%d:%d], s34 offen" % (vr(B_OF(ks % NOB, u), 4), B_VO(u), SO, SO + 3), ("o", ks)))
        out.append("    s_add_u32 s34, s34, 2048")
        return out
    def emit(h, lst):
        for l in lst:
            if isinstance(l, tuple): h(l[0]); vm.issue(l[1])
            else: h(l)
    def wreads(ks):
        out = []
        slot = ks % NSLOT
        for nu in range(6):
            for u in range(2):
                if nu < 4:
                    out.append(("    ds_read_b64_tr_b16 %s, v%d offset:%d" % (vr(B_WF(ks & 1, nu) + 2 * u, 2), B_R64(nu), slot * 6144 + u * 1024), ("f", ks)))
                else:
                    out.append(("    ds_read_b64_tr_b16 %s, v%d offset:%d" % (vr(B_WF(ks & 1, nu) + 2 * u, 2), B_R32(nu - 4), slot * 6144 + u * 512), ("f", ks)))
        return out
    PW, PO = NSLOT - 1, NOB - 1
    for ks in range(PW):
        emit(a, wdma(ks))
        if ks < PO: emit(a, oload(ks))
    a(vm.need([("w", 0)]))
    for (l, tg) in wreads(0): a(l); lg.issue(tg)
    for ks in range(32):
        w = lg.need([("f", ks)])
        if w: a(w)
        w = vm.need([("o", ks), ("w", ks + 1)])
        if w: a(w)
        rd = wreads(ks + 1) if ks + 1 < 32 else []
        mem = []
        if ks + PO < 32: pass
        extra = (wdma(ks + PW) if ks + PW < 32 else [])
        k = 0
        first = True
        for nu in range(6):
            for u in range(3):
                acc = vr(B_ACC(nu, u), 4)
                a("    v_mfma_f32_16x16x32_bf16 %s, %s, %s, %s" % (acc, vr(B_WF(ks & 1, nu), 4), vr(B_OF(ks % NOB, u), 4), "0" if ks == 0 else acc))
                k += 1
                if rd and k <= 12:
                    l, tg = rd.pop(0); a(l); lg.issue(tg)
                if extra and k >= 4:
                    l = extra.pop(0); emit(a, [l])
                    while extra and not isinstance(l, tuple) and isinstance(extra[0], str):
                        l = extra.pop(0); emit(a, [l])
        emit(a, extra)
        if ks + PO < 32:
            emit(a, oload(ks + PO))
    a("    s_barrier")
    a("    v_lshlrev_b32 v%d, 4, v%d" % (t, L))
    a("    s_mul_i32 s33, s%d, 18432" % sWAVE)
    a("    v_add_u32 v%d, s33, v%d" % (t + 1, t))
    a("    s_nop 7")
    for i in range(18):
        a("    ds_write_b128 v%d, %s offset:%d" % (t + 1, vr(4 * i, 4), i * 1024))
    a("    s_waitcnt lgkmcnt(0)")
    a("    s_barrier")
    a("    v_and_b32 v%d, 15, v%d" % (t + 2, L))
    a("    v_lshrrev_b32 v%d, 4, v%d" % (t + 3, L))
    a("    v_add_u32 v%d, s27, v%d" % (t + 2, t + 2))
    a("    s_movk_i32 s%d, 1152" % sT1)
    a("    v_lshlrev_b32 v%d, 3, v%d" % (t + 3, t + 3))
    a("    v_mad_u32_u24 v%d, v%d, s%d, v%d" % (t + 2, t + 2, sT1, t + 3))
    for it in range(5):
        a("    s_add_u32 s34, s%d, %d" % (sWAVE, 4 * it))
        if it == 4:
            a("    s_cmp_ge_u32 s34, 18")
            a("    s_cbranch_scc1 L_doneB")
        a("    s_lshl_b32 s35, s34, 10")
        a("    v_add_u32 v%d, s35, v%d" % (t + 4, t))
        a("    v_add_u32 v%d, %d, v%d" % (t + 5, 2 * 18432, t + 4))
        a("    ds_read_b128 v[0:3], v%d" % (t + 4))
        a("    ds_read_b128 v[4:7], v%d offset:18432" % (t + 4))
        a("    ds_read_b128 v[8:11], v%d" % (t + 5))
        a("    ds_read_b128 v[12:15], v%d offset:18432" % (t + 5))
        a("    s_mul_i32 s35, s34, 86")
        a("    s_lshr_b32 s35, s35, 8")
        a("    s_mul_i32 s36, s35, 3")
        a("    s_sub_u32 s36, s34, s36")
        a("    s_mul_i32 s36, s36, %d" % (16 * 1152))
        a("    s_lshl_b32 s37, s35, 4")
        a("    s_add_u32 s38, s37, s30")
        a("    s_sub_u32 s39, s37, 64")
        a("    s_add_u32 s39, s39, s31")
        a("    s_cmp_lt_u32 s35, 4")
        a("    s_cselect_b32 s38, s38, s39")
        a("    s_lshl_b32 s38, s38, 1")
        a("    s_add_u32 s36, s36, s38")
        a("    s_waitcnt lgkmcnt(0)")
        for e in range(4):
            a("    v_add_f32 v%d, v%d, v%d" % (e, e, 4 + e))
            a("    v_add_f32 v%d, v%d, v%d" % (8 + e, 8 + e, 12 + e))
        for e in range(4):
            a("    v_add_f32 v%d, v%d, v%d" % (e, e, 8 + e))
        a("    v_cvt_pk_bf16_f32 v16, v0, v1")
        a("    v_cvt_pk_bf16_f32 v17, v2, v3")
        a("    buffer_store_dwordx2 v[16:17], v%d, s[%d:%d], s36 offen" % (t + 2, SX, SX + 3))
        a("    s_nop 1")

def gen_kernel_B(cfg):
    a = Asm()
    a(kernel_begin(cfg.nameB))
    a("    s_cmp_ge_u32 s2, 240")
    a("    s_cbranch_scc1 L_doneB")
    stamp(a, cfg, 0)
    a("    s_load_dwordx4 s[68:71], s[0:1], 32")
    a("    s_load_dwordx2 s[66:67], s[0:1], 56")
    a("    s_and_b32 s%d, s2, 7" % sB)
    a("    s_lshr_b32 s%d, s2, 3" % sH)
    a("    v_lshrrev_b32 v1, 6, v0")
    a("    v_and_b32 v%d, 63, v0" % LANE)
    a("    v_readfirstlane_b32 s%d, v1" % sWAVE)
    a("    s_waitcnt lgkmcnt(0)")
    gen_outproj_body(a, cfg, sB, sH)
    if cfg.stamps:
        a("    s_waitcnt vmcnt(0)")
        stamp(a, cfg, 1)
        a("    s_waitcnt lgkmcnt(0)")
        a("    s_lshl_b32 s%d, s2, 6" % sT0)
        a("    s_add_u32 s62, s66, 0x10000000")
        a("    s_addc_u32 s63, s67, 0")
        a("    s_add_u32 s62, s62, s%d" % sT0)
        a("    s_addc_u32 s63, s63, 0")
        a("    v_cmp_eq_u32 vcc, 0, v%d" % LANE)
        a("    s_cmp_eq_u32 s%d, 0" % sWAVE)
        a("    s_cbranch_scc0 L_endB")
        a("    s_and_saveexec_b64 s[38:39], vcc")
        a("    v_mov_b32 v0, 0")
        for i in range(2):
            a("    v_mov_b32 v2, s%d" % (sSTAMP + 2 * i))
            a("    v_mov_b32 v3, s%d" % (sSTAMP + 2 * i + 1))
            a("    global_store_dwordx2 v0, v[2:3], s[62:63] offset:%d" % (48 + 8 * i))
            a("    s_nop 1")
        a("L_endB:")
        a("    s_endpgm")
    a("L_doneB:")
    a("    s_endpgm")
    verify(a.lines, "kernelB")
    return a.text()

if __name__ == "__main__":
    import argparse
    ap = argparse.ArgumentParser()
    ap.add_argument("-o", default="two.s")
    ap.add_argument("--stamps", action="store_true")
    ap.add_argument("--df", action="store_true")
    ap.add_argument("--mapping", default="batch")
    args = ap.parse_args()
    cfg = Cfg(nameA="mha_attn_kernel", nameB="mha_outproj_kernel", stamps=args.stamps, nt=not args.df, mapping=args.mapping)
    txt = header([(cfg.nameA, (256, 1, 1), (256, 1, 1), 163840), (cfg.nameB, (240, 1, 1), (256, 1, 1), 163840)])
    txt += gen_kernel_A(cfg) + gen_kernel_B(cfg)
    txt += kernel_desc(cfg.nameA) + kernel_desc(cfg.nameB, vgpr=256, accum=256)
    open(args.o, "w").write(txt)
```
